```python
import torch

def _softmax(x, axis=-1):
    return torch.softmax(x, dim=axis)
def _gelu(x):
    return torch.nn.functional.gelu(x, approximate="tanh")
def _silu(x):
    return torch.nn.functional.silu(x)
def _sigmoid(x):
    return torch.sigmoid(x)
def _layernorm(x, axis=-1, eps=1e-5):
    m = x.mean(dim=axis, keepdim=True)
    v = x.var(dim=axis, keepdim=True, unbiased=False)
    return (x - m) / torch.sqrt(v + eps)
def _scatter_add(tgt, idx, src, axis=0):
    return tgt.clone().index_add_(axis, idx, src)
def _segment_sum(src, seg, n):
    out = torch.zeros((n,) + src.shape[1:], dtype=src.dtype)
    return out.index_add_(0, seg, src)
def _pad(x, pw):
    flat = tuple(v for pair in reversed(pw) for v in pair)
    return torch.nn.functional.pad(x, flat)

kernel_name = 'interleave_layers__sliding_block__glu_gated_swiglu__prompt'

def setup_inputs():

    _w = (lambda a: (lambda t: t.to(torch.bfloat16) if t.is_floating_point() else t)(torch.as_tensor(a)))
    def _A_setup():
        B, S, D = 1, 2048, 512
        return {
            "x": _w((lambda *s: torch.randn(*s, dtype=torch.bfloat16) * 0.05)(B, S, D)),
            "wqkv": _w((lambda *s: torch.randn(*s, dtype=torch.bfloat16) * 0.05)(D, 3 * D)),
            "wo": _w((lambda *s: torch.randn(*s, dtype=torch.bfloat16) * 0.05)(D, D)),
        }
    _A_in = _A_setup()

    def _B_setup():
        B, S, D, F = 1, 2048, 512, 1376
        return {
            "x": _w((lambda *s: torch.randn(*s, dtype=torch.bfloat16) * 0.05)(B, S, D)),
            "w1": _w((lambda *s: torch.randn(*s, dtype=torch.bfloat16) * 0.8)(D, F) * (2.0 / D) ** 0.5),
            "w3": _w((lambda *s: torch.randn(*s, dtype=torch.bfloat16) * 0.8)(D, F) * (2.0 / D) ** 0.5),
            "w2": _w((lambda *s: torch.randn(*s, dtype=torch.bfloat16) * 0.8)(F, D) * (2.0 / F) ** 0.5),
        }
    _B_in = _B_setup()

    return {
        "A_x": _A_in["x"],
        "A_wqkv": _A_in["wqkv"],
        "A_wo": _A_in["wo"],
        "B_x": _B_in["x"],
        "B_w1": _B_in["w1"],
        "B_w3": _B_in["w3"],
        "B_w2": _B_in["w2"],
    }

def reference(A_x, A_wqkv, A_wo, B_x, B_w1, B_w3, B_w2):
    def _A_ref(x, wqkv, wo):
        B, S, D = x.shape
        H = 32; Dh = D // H; W = 256
        qkv = (lambda x, *d: x.permute(*d))((x @ wqkv).reshape(B, S, 3, H, Dh), 2, 0, 3, 1, 4)
        q, k, v = qkv[0], qkv[1], qkv[2]
        scores = torch.einsum("bhqd,bhkd->bhqk", q, k) * (Dh ** -0.5)
        idx = torch.arange(S)
        mask = (idx[:, None] - idx[None, :] >= 0) & (idx[:, None] - idx[None, :] < W)
        scores = torch.where(mask[None, None], scores, -1e9)
        p = _softmax(scores, axis=-1)
        o = torch.einsum("bhqk,bhkd->bhqd", p, v)
        return (lambda x, *d: x.permute(*d))(o, 0, 2, 1, 3).reshape(B, S, D) @ wo

    def _B_ref(x, w1, w3, w2):
        gate = torch.einsum("bsd,df->bsf", x, w1)
        up = torch.einsum("bsd,df->bsf", x, w3)
        h = _silu(gate) * up
        out = torch.einsum("bsf,fd->bsd", h, w2)
        return out

    x = A_x
    x = x + _A_ref(_layernorm(x, axis=-1), A_wqkv, A_wo)
    x = x + _B_ref(_layernorm(x, axis=-1), B_w1, B_w3, B_w2)
    x = x + _A_ref(_layernorm(x, axis=-1), A_wqkv, A_wo)
    x = x + _B_ref(_layernorm(x, axis=-1), B_w1, B_w3, B_w2)
    return x
```

```python
import re
class Ins:
    __slots__ = ("t", "tag", "path", "kind")
    def __init__(s, t, tag=None, path=(), kind=None): s.t, s.tag, s.path, s.kind = t, tag, path, kind

def regs_of(op):
    op = op.strip()
    op = re.sub(r"^-|^abs\(|\)$|^\|", "", op)
    m = re.fullmatch(r"([vas])(\d+)", op)
    if m: return {(m.group(1), int(m.group(2)))}
    m = re.fullmatch(r"([vas])\[(\d+):(\d+)\]", op)
    if m: return {(m.group(1), i) for i in range(int(m.group(2)), int(m.group(3)) + 1)}
    if op == "vcc": return {("s", 106), ("s", 107)}
    if op == "m0": return {("m", 0)}
    if op == "exec": return {("x", 0)}
    return set()

TRANS = ("v_exp_f32", "v_rcp_f32", "v_rsq_f32", "v_log_f32", "v_sqrt_f32")
def analyze(t):
    t = t.split(";")[0].strip()
    p = t.split(None, 1)
    mn = p[0]; ops = []
    if len(p) > 1:
        ops = [x.strip() for x in re.split(r",\s*(?![^\[]*\])", p[1])]
        last = ops[-1].split()
        ops[-1] = last[0] if last else ""
        mods = last[1:]
    else: mods = []
    R = [regs_of(o) for o in ops]
    U = lambda l: set().union(*l) if l else set()
    if mn.startswith("v_mfma"):
        return ("mfma", R[0], R[1] | R[2], dict(c=R[3], passes=8 if "32x32" in mn else 4))
    if mn.startswith("v_cmp"): return ("valu", R[0], U(R[1:]), {})
    if mn.startswith("v_readfirstlane") or mn.startswith("v_readlane"): return ("valu", R[0], U(R[1:]), dict(rl=1))
    if mn.startswith("v_permlane"): return ("valu", R[0] | R[1], R[0] | R[1], dict(pl=1))
    if mn.startswith("v_"):
        rd = U(R[1:])
        if mn.startswith(("v_fmac", "v_dot2c")): rd |= R[0]
        if "dpp" in t or "row_" in t or "quad_perm" in t: return ("valu", R[0], rd, dict(pl=1))
        return ("valu", R[0], rd, dict(trans=mn in TRANS))
    if mn.startswith("buffer_load"):
        if "lds" in mods: return ("vmem", set(), U(R) | {("m", 0)}, dict(dma=1))
        return ("vmem", R[0], U(R[1:]), {})
    if mn.startswith(("buffer_store", "buffer_atomic")):
        return ("vmem", set(), U(R), dict(wide=R[0] if len(R[0]) >= 3 else set()))
    if mn.startswith(("ds_read", "ds_bpermute")) or "_rtn" in mn: return ("ds", R[0], U(R[1:]), {})
    if mn.startswith("ds_"): return ("ds", set(), U(R), {})
    if mn == "s_nop": return ("nop", set(), set(), dict(n=int(ops[0]) + 1))
    if mn.startswith(("s_load", "s_memtime", "s_memrealtime")): return ("smem", R[0], U(R[1:]), {})
    if mn.startswith("s_"):
        if mn.startswith(("s_cmp", "s_cbranch", "s_branch", "s_waitcnt", "s_barrier", "s_sleep", "s_setprio", "s_endpgm")): return ("salu", set(), U(R), {})
        return ("salu", R[0] if R else set(), U(R[1:]), {})
    raise ValueError("unknown instr " + t)

class Asm:
    def __init__(s): s.L = []; s.path = (); s.nlab = 0; s.ntag = 0
    def e(s, text, tag=None):
        for ln in text.split("\n"):
            ln = ln.strip()
            if ln: s.L.append(Ins(ln, tag, s.path))
        return tag
    def mk(s, text, tag=None): return Ins(text, tag, None)
    def put(s, ins):
        if isinstance(ins, str): return s.e(ins)
        ins.path = s.path; s.L.append(ins)
    def newtag(s): s.ntag += 1; return s.ntag
    def label(s, name): s.L.append(Ins(name + ":", None, s.path, "label"))
    def newlab(s, p="L"): s.nlab += 1; return f"{p}_{s.nlab}"
    def wv(s, tag): return Ins("WAIT", tag, None, "wv")
    def wl(s, tag): return Ins("WAIT", tag, None, "wl")
    def push(s): s.nlab += 1; s.path = s.path + (s.nlab,)
    def pop(s): s.path = s.path[:-1]
    def weave(s, main, fill, per):
        fi = 0
        for m in main:
            s.put(m)
            isw = (not isinstance(m, str)) and m.kind in ("wv", "wl")
            txt = m if isinstance(m, str) else m.t
            if isw or not txt.startswith("v_mfma"): continue
            c = 0
            while fi < len(fill) and c < per:
                f = fill[fi]; fi += 1; s.put(f)
                ft = f if isinstance(f, str) else f.t
                c += 2 if ft.startswith(TRANS) else (0 if ft == "WAIT" else 1)
        while fi < len(fill): s.put(fill[fi]); fi += 1
    def resolve(s):
        out = []
        info = [None if x.kind else analyze(x.t) for x in s.L]
        for i, x in enumerate(s.L):
            if x.kind in ("wv", "wl"):
                cl = "vmem" if x.kind == "wv" else "ds"
                n = 0; found = False
                for j in range(i - 1, -1, -1):
                    if info[j] is None: continue
                    if x.kind == "wl" and info[j][0] == "smem": raise ValueError("smem inside counted lgkm window")
                    if info[j][0] != cl: continue
                    if s.L[j].tag == x.tag: found = True; break
                    if x.path[:len(s.L[j].path)] == s.L[j].path: n += 1
                assert found, f"tag {x.tag} not found"
                mx = 63 if cl == "vmem" else 15
                n = min(n, mx)
                x.t = f"s_waitcnt {'vmcnt' if cl == 'vmem' else 'lgkmcnt'}({n})"; x.kind = None
        hist = []
        res = []
        for x in s.L:
            if x.kind == "label": res.append(x.t); continue
            cl, w, r, ex = analyze(x.t)
            need = 0; d = 0
            for (pc, pw, pr, pe) in reversed(hist[-24:]):
                q = 0
                vw = {z for z in pw if z[0] in "va"}; sw = {z for z in pw if z[0] == "s"}
                if pc == "valu":
                    if cl == "mfma" and vw & (r | ex["c"]): q = 2
                    if cl == "valu" and ex.get("pl") and vw & r: q = 2
                    if cl == "valu" and ex.get("rl") and vw & r: q = 1
                    if cl == "valu" and pe.get("trans") and vw & r and not ex.get("trans"): q = max(q, 1)
                    if pe.get("trans") and cl in ("vmem", "ds") and vw & r: q = max(q, 1)
                    if cl == "valu" and sw & r: q = max(q, 4 if ex.get("rl") else 2)
                    if cl == "vmem" and sw & r: q = 5
                    if cl == "salu" and sw & r: q = max(q, 1)
                if pc == "mfma":
                    P = pe["passes"]
                    if cl == "mfma":
                        if pw & r: q = 8 if P == 4 else 12
                        elif pw & ex["c"] and not (pw == ex["c"] and P == ex["passes"]): q = 6 if P == 4 else 10
                        elif pw & w and pw != ex["c"]: q = 8 if P == 4 else 12
                    elif pw & (r | w): q = 8 if P == 4 else 12
                    if cl == "valu" and pe["c"] & w: q = max(q, 3 if P == 4 else 7)
                if pc == "vmem" and pe.get("wide") and pe["wide"] & w: q = max(q, 2)
                if pc == "salu" and ("m", 0) in pw and ex.get("dma"): q = max(q, 1)
                need = max(need, q - d)
                d += pe.get("n", 1)
            while need > 0:
                k = min(need, 16); res.append(f"s_nop {k-1}"); hist.append(("nop", set(), set(), dict(n=k))); need -= k
            res.append(x.t); hist.append((cl, w, r, ex))
        return "\n".join(res)
```

```python
import sys
from asmlib import *
NAME = "interleave_layers__sliding_block__glu_gated_swiglu__prompt"
KVF = 0x10000
WQKV, WO, W13, W2 = 0x100000, 0x280000, 0x300000, 0x600000
LSTR = 0x2000000
oKV, oO, oX1, oST, oH, oX2 = 0, 0x400000, 0x600000, 0x800000, 0x900000, 0x1000000
X0 = oX2
HRT = 172 * 256
WS_BYTES = 0x10000000
SCR = 98304; MISC = SCR + 49152
L_CS, L_ST1, L_SP, L_Q = MISC, MISC + 512, MISC + 2048, MISC + 8192
LOG2E = 1.4426950408889634
import struct
def fb(x): return "0x%08x" % struct.unpack("<I", struct.pack("<f", x))[0]
def vr(b, n=4): return f"v[{b}:{b+n-1}]"
def ar(b, n=4): return f"a[{b}:{b+n-1}]"
M32 = "v_mfma_f32_32x32x16_bf16"; M16 = "v_mfma_f32_16x16x32_bf16"

def srd(a, d, lo, size):
    a.e(f"s_mov_b32 s{d}, s{lo}\ns_mov_b32 s{d+1}, s{lo+1}\ns_mov_b32 s{d+2}, {size}\ns_mov_b32 s{d+3}, 0x20000")

def prep():
    a = Asm(); e = a.e
    e("s_cmp_ge_u32 s2, 526\ns_cbranch_scc1 P_END")
    e("s_load_dwordx16 s[32:47], s[0:1], 0\ns_load_dwordx2 s[48:49], s[0:1], 72")
    e("v_lshrrev_b32 v1, 6, v0\nv_and_b32 v2, 63, v0")
    e("v_readfirstlane_b32 s3, v1")
    e("s_lshl_b32 s12, s2, 2\ns_add_u32 s12, s12, s3")
    e("v_and_b32 v3, 15, v2\nv_lshrrev_b32 v4, 4, v2")
    e("s_waitcnt lgkmcnt(0)")
    srd(a, 4, 48, WS_BYTES)
    e("s_mov_b32 s23, 0x20000\ns_mov_b32 s26, 32\ns_mov_b32 s27, 48")
    e("s_cmp_ge_u32 s12, 2072\ns_cbranch_scc1 P_Z\ns_cmp_ge_u32 s12, 1560\ns_cbranch_scc1 P_X")
    e("s_cmp_ge_u32 s12, 1216\ns_cbranch_scc1 P_W2\ns_cmp_ge_u32 s12, 512\ns_cbranch_scc1 P_W13\ns_cmp_ge_u32 s12, 384\ns_cbranch_scc1 P_WO")
    def i0_32():
        e("v_and_b32 v6, 4, v3\nv_lshlrev_b32 v6, 2, v6\nv_and_b32 v7, 1, v3\nv_lshl_add_u32 v6, v7, 3, v6\nv_and_b32 v7, 2, v3\nv_lshl_add_u32 v6, v7, 1, v6\nv_lshl_add_u32 v6, v4, 5, v6")
    e("s_and_b32 s13, s12, 15\ns_lshr_b32 s14, s12, 4\ns_mov_b32 s20, s34\ns_mov_b32 s21, s35\ns_mov_b32 s22, %d\ns_mov_b32 s15, 3072" % (512*3072))
    i0_32()
    e("v_lshrrev_b32 v5, 3, v3\ns_lshl_b32 s16, s14, 1\nv_add_u32 v5, s16, v5")
    e("v_and_b32 v7, 15, v5\nv_mul_u32_u24 v7, 3, v7\nv_lshrrev_b32 v5, 4, v5\nv_add_u32 v5, v5, v7")
    e("v_lshlrev_b32 v5, 15, v5\nv_lshl_add_u32 v5, v6, 4, v5\ns_lshl_b32 s16, s13, 11\ns_add_u32 s16, s16, %d\nv_add_u32 v5, s16, v5\ns_branch P_GO" % WQKV)
    a.label("P_WO")
    e("s_sub_u32 s12, s12, 384\ns_and_b32 s13, s12, 15\ns_lshr_b32 s14, s12, 4\ns_mov_b32 s20, s36\ns_mov_b32 s21, s37\ns_mov_b32 s22, %d\ns_mov_b32 s15, 1024" % (512*1024))
    e("v_lshrrev_b32 v5, 3, v3\nv_lshlrev_b32 v5, 1, v5\nv_and_b32 v7, 1, v3\nv_add_u32 v5, v5, v7\ns_lshl_b32 s16, s14, 2\nv_add_u32 v5, s16, v5")
    e("v_and_b32 v6, 6, v3\nv_lshlrev_b32 v6, 1, v6\nv_lshl_add_u32 v6, v4, 4, v6")
    e("v_lshlrev_b32 v5, 14, v5\nv_lshl_add_u32 v5, v6, 4, v5\ns_lshl_b32 s16, s13, 10\ns_add_u32 s16, s16, %d\nv_add_u32 v5, s16, v5\ns_branch P_GO" % WO)
    a.label("P_W13")
    e("s_sub_u32 s12, s12, 512\ns_cmp_ge_u32 s12, 352\ns_cselect_b32 s20, s42, s40\ns_cselect_b32 s21, s43, s41\ns_cselect_b32 s17, 32, 0\ns_cselect_b32 s16, 352, 0\ns_sub_u32 s12, s12, s16")
    e("s_and_b32 s13, s12, 15\ns_lshr_b32 s14, s12, 4\ns_mov_b32 s22, %d\ns_mov_b32 s15, 2752\ns_mov_b32 s26, 64\ns_mov_b32 s27, 80" % (512*2752))
    e("v_lshrrev_b32 v5, 1, v3\ns_lshl_b32 s16, s14, 3\nv_add_u32 v5, s16, v5")
    e("v_and_b32 v6, 1, v3\nv_lshlrev_b32 v6, 3, v6\nv_lshl_add_u32 v6, v4, 4, v6")
    e("v_lshlrev_b32 v5, 14, v5\nv_lshl_add_u32 v5, v6, 4, v5\ns_lshl_b32 s16, s13, 10\ns_add_u32 s16, s16, s17\ns_add_u32 s16, s16, %d\nv_add_u32 v5, s16, v5\ns_branch P_GO" % W13)
    a.label("P_W2")
    e("s_sub_u32 s12, s12, 1216\ns_and_b32 s14, s12, 7\ns_lshr_b32 s13, s12, 3\ns_mov_b32 s20, s44\ns_mov_b32 s21, s45\ns_mov_b32 s22, %d\ns_mov_b32 s15, 1024" % (1376*1024))
    i0_32()
    e("v_lshrrev_b32 v5, 3, v3\ns_lshl_b32 s16, s14, 1\nv_add_u32 v5, s16, v5\nv_mul_u32_u24 v5, %d, v5" % (86*1024))
    e("v_lshl_add_u32 v5, v6, 4, v5\ns_lshl_b32 s16, s13, 11\ns_add_u32 s16, s16, %d\nv_add_u32 v5, s16, v5" % W2)
    a.label("P_GO")
    e("s_lshl_b32 s16, s13, 5\nv_lshl_add_u32 v8, v4, 3, s16\nv_mul_lo_u32 v8, v8, s15\ns_lshl_b32 s16, s14, 7\nv_add_u32 v8, s16, v8\nv_lshl_add_u32 v8, v3, 3, v8")
    e("s_mov_b32 s16, 0")
    for i in range(8):
        e(f"buffer_load_dwordx2 v[{10+2*i}:{11+2*i}], v8, s[20:23], s16 offen")
        if i < 7: e("s_add_u32 s16, s16, s15")
    e("s_mov_b32 s18, 0x05040100\ns_mov_b32 s19, 0x07060302\ns_waitcnt vmcnt(0)")
    for t in range(4):
        for p in range(4):
            e(f"v_perm_b32 v{28+4*t+p}, v{10+2*(2*p+1)+t//2}, v{10+4*p+t//2}, s{18+(t&1)}")
    e("buffer_store_dwordx4 v[28:31], v5, s[4:7], 0 offen\nbuffer_store_dwordx4 v[32:35], v5, s[4:7], 0 offen offset:16")
    e("buffer_store_dwordx4 v[36:39], v5, s[4:7], s26 offen\nbuffer_store_dwordx4 v[40:43], v5, s[4:7], s27 offen\ns_endpgm")
    a.label("P_X")
    e("s_sub_u32 s12, s12, 1560\ns_mov_b32 s20, s32\ns_mov_b32 s21, s33\ns_mov_b32 s22, 0x200000")
    e("v_lshlrev_b32 v8, 4, v2\ns_lshl_b32 s16, s12, 12")
    for i in range(4): e(f"buffer_load_dwordx4 v[{12+4*i}:{15+4*i}], v8, s[20:23], s16 offen offset:{1024*i}")
    e("v_lshlrev_b32 v5, 8, v2\ns_lshr_b32 s16, s12, 2\ns_lshl_b32 s16, s16, 14\ns_and_b32 s17, s12, 3\ns_lshl_b32 s17, s17, 6\ns_add_u32 s16, s16, s17\ns_add_u32 s16, s16, %d" % X0)
    e("s_waitcnt vmcnt(0)")
    for i in range(4): e(f"buffer_store_dwordx4 v[{12+4*i}:{15+4*i}], v5, s[4:7], s16 offen offset:{16*i}")
    e("s_endpgm")
    a.label("P_Z")
    e("s_sub_u32 s12, s12, 2072\ns_lshl_b32 s16, s12, 12\nv_lshlrev_b32 v8, 4, v2")
    for i in range(4): e(f"v_mov_b32 v{12+i}, 0")
    for i in range(4): e(f"buffer_store_dwordx4 v[12:15], v8, s[4:7], s16 offen offset:{1024*i}")
    a.label("P_END")
    e("s_endpgm")
    return a.resolve()

def desc(name, vgpr, acc, sgpr):
    return f""".p2align 6
.amdhsa_kernel {name}
  .amdhsa_next_free_vgpr {vgpr}
  .amdhsa_next_free_sgpr {sgpr}
  .amdhsa_accum_offset {acc}
  .amdhsa_group_segment_fixed_size 0
  .amdhsa_kernarg_size 80
  .amdhsa_user_sgpr_count 2
  .amdhsa_user_sgpr_kernarg_segment_ptr 1
  .amdhsa_system_sgpr_workgroup_id_x 1
.end_amdhsa_kernel
"""
def build(main_body, extra_launch=""):
    return f"""; generated by gen/gen.py  (hand-designed schedule, python emitter)
; @launch kernel=prep_kernel grid=(526,1,1) block=(256,1,1) lds=0
{extra_launch}; @launch kernel={NAME}_kernel grid=(256,1,1) block=(256,1,1) lds=163840
.amdgcn_target "amdgcn-amd-amdhsa--gfx950"
.text
.globl prep_kernel
.p2align 8
.type prep_kernel,@function
prep_kernel:
{prep()}
.globl {NAME}_kernel
.p2align 8
.type {NAME}_kernel,@function
{NAME}_kernel:
{main_body}
.section .rodata,"a"
{desc("prep_kernel", 48, 48, 56)}
{desc(NAME + "_kernel", 512, 256, 100)}
"""
```

```python
import sys
from gen import *
STAMP = "--stamp" in sys.argv
WS = "s[4:7]"
T_OA, T_X1A, T_HA, T_X2A = 0, 2, 4, 6

def main():
    a = Asm(); e = a.e; mk = a.mk
    nst = [0]
    def stamp():
        if not STAMP: return
        i = nst[0]; nst[0] += 1
        e(f"s_memrealtime s[96:97]\ns_waitcnt lgkmcnt(0)\nv_mov_b32 v127, s96\ns_lshl_b32 s98, s18, 7\ns_add_u32 s98, s98, s99")
        e(f"buffer_store_dword v127, off, {WS}, s98 offset:{4*i}")
    def poll(soff, target, vt=126):
        L = a.newlab("POLL"); X = a.newlab("PX")
        a.label(L)
        e(f"buffer_load_dword v{vt}, off, {WS}, {soff} sc1\ns_waitcnt vmcnt(0)\nv_readfirstlane_b32 s23, v{vt}")
        e(f"s_cmp_ge_u32 s23, {target}\ns_cbranch_scc1 {X}")
        e(f"s_sub_u32 s21, s21, 1\ns_cbranch_scc1 {X}_t\ns_sleep 1\ns_branch {L}")
        a.label(X + "_t"); e("s_mov_b32 s21, 0")
        a.label(X)
    def poll_cnt(T, base="s22"):
        e(f"s_add_u32 s24, {base}, {2048*T}"); poll("s24", 16)
    def signal(soff_fn, vt=126):
        L = a.newlab("SIG")
        e("s_barrier")
        e(f"s_cmp_lg_u32 s16, 0\ns_cbranch_scc1 {L}")
        a.push()
        soff_fn()
        e(f"s_mov_b64 exec, 1\nv_mov_b32 v{vt}, 1\nbuffer_atomic_add v{vt}, off, {WS}, s24\ns_mov_b64 exec, -1")
        a.pop()
        a.label(L)
    def signal_cnt(T, vt=126): signal(lambda: e(f"s_add_u32 s24, s22, {2048*T}"), vt)
    def dma4(lds_s, glob_s, tag, sc="sc1"):
        e(f"s_mov_b32 m0, {lds_s}")
        for i in range(4): e(f"buffer_load_dwordx4 v1, {WS}, {glob_s} offen offset:{1024*i} {sc} lds", tag)
    def setB(i):
        return ar(192 + 4*i) if i < 16 else vr(144 + 4*(i - 16))
    def woR(i):
        return ar(192 + 4*i) if i < 16 else vr(192 + 4*(i - 16))

    e("s_cmp_ge_u32 s2, 256\ns_cbranch_scc1 M_END")
    e("s_load_dwordx2 s[12:13], s[0:1], 56\ns_load_dwordx2 s[26:27], s[0:1], 72")
    e("v_lshrrev_b32 v1, 6, v0\nv_and_b32 v0, 63, v0")
    e("v_readfirstlane_b32 s16, v1")
    e("s_and_b32 s14, s2, 7\ns_lshl_b32 s14, s14, 1\ns_lshr_b32 s15, s2, 7\ns_add_u32 s14, s14, s15\ns_lshr_b32 s15, s2, 3\ns_and_b32 s15, s15, 15")
    e("v_lshlrev_b32 v1, 4, v0")
    e("s_waitcnt lgkmcnt(0)")
    srd(a, 4, 26, WS_BYTES)
    srd(a, 8, 26, WS_BYTES)
    e(f"s_mul_i32 s24, s16, 24576\ns_mul_i32 s25, s15, 98304\ns_add_u32 s25, s25, s24\ns_add_u32 s25, s25, {WQKV}")
    for i in range(6):
        dma4("s24", "s25", "wq", sc="")
        if i < 5: e("s_add_u32 s24, s24, 4096\ns_add_u32 s25, s25, 4096")
    e("v_and_b32 v24, 15, v0\nv_lshlrev_b32 v24, 4, v24\nv_lshrrev_b32 v25, 5, v0\nv_lshl_add_u32 v24, v25, 8, v24\nv_bfe_u32 v26, v0, 4, 1")
    e(f"v_lshl_add_u32 v2, v26, 14, v24\nv_mul_u32_u24 v26, {HRT}, v26\nv_add_u32 v3, v26, v24")
    e("v_and_b32 v26, 31, v0\nv_lshlrev_b32 v25, 2, v25\nv_sub_u32 v26, v26, v25")
    for r in range(16): e(f"v_cmp_le_i32 s[{64+2*r}:{65+2*r}], {8*(r//4) + r%4}, v26")
    e("v_mov_b32 v27, 0xffff\nv_mov_b32 v28, 0xffff0000")
    for p in range(8):
        e(f"v_cndmask_b32 v29, 0, v27, s[{64+4*p}:{65+4*p}]\nv_cndmask_b32 v30, 0, v28, s[{66+4*p}:{67+4*p}]\nv_or_b32 v{4+p}, v29, v30")
    e("s_mov_b32 s18, 0\ns_mov_b32 s17, %d\ns_mov_b32 s20, 0\ns_mov_b32 s21, 400000\ns_lshl_b32 s22, s14, 7\ns_lshl_b32 s41, s14, 17" % LSTR)
    e("s_cmp_eq_u32 s14, 1\ns_cselect_b32 s19, 4, 0\ns_cmp_eq_u32 s14, 0\ns_cselect_b32 s19, 8, s19")
    e("s_and_b32 s42, s16, 1\ns_lshl_b32 s44, s42, 4\ns_lshl_b32 s44, 0xffff, s44\ns_mov_b32 s45, s44\ns_mov_b32 s46, 0x3f803f80")
    if STAMP: e("s_lshl_b32 s99, s2, 10\ns_lshl_b32 s98, s16, 8\ns_add_u32 s99, s99, s98\ns_add_u32 s99, s99, 0x80000")
    e(f"v_mov_b32 v24, 0\nv_lshlrev_b32 v25, 3, v0\nv_mov_b32 v26, 0\nv_mov_b32 v27, 0\nv_add_u32 v25, {L_CS}, v25\nds_write_b64 v25, v[26:27]")
    a.label("LAYER")
    stamp()
    L = a.newlab("K1NP")
    e(f"s_cmp_eq_u32 s18, 0\ns_cbranch_scc1 {L}")
    a.push()
    e(f"s_lshr_b32 s24, s16, 1\ns_lshl_b32 s24, s24, 11\ns_add_u32 s24, s24, s22\ns_sub_u32 s24, s24, {32768 - 2048*T_X2A}")
    poll("s24", 16)
    a.pop(); a.label(L)
    stamp()
    e(f"s_lshl_b32 s24, s16, 15\ns_add_u32 s24, s24, s41\ns_add_u32 s24, s24, s20\ns_add_u32 s24, s24, {oX2}")
    for ks in range(32):
        e(f"buffer_load_dwordx4 {vr(128+4*ks)}, v2, {WS}, s24 offen offset:{512*(ks%8)} sc1", ("x", ks))
        if ks % 8 == 7 and ks < 31: e("s_add_u32 s24, s24, 4096")
    e("v_add_u32 v110, 0x10000, v1")
    L = a.newlab("K1CS")
    e(f"s_cmp_lg_u32 s18, 0\ns_cbranch_scc1 {L}")
    a.push()
    e("s_waitcnt vmcnt(32) lgkmcnt(0)\ns_barrier")
    e("s_lshl_b32 s24, s16, 13\nv_add_u32 v111, s24, v1\nv_add_u32 v112, s24, v110")
    for i in range(4): e(f"v_mov_b32 v{104+i}, s46")
    for t in range(3):
        for j in range(8):
            e(f"ds_read_b128 {vr(72+4*j)}, {'v112' if t == 2 else 'v111'} offset:{(t%2)*32768 + 1024*j}", ("cs", t, j))
        for j in range(8):
            a.put(a.wl(("cs", t, j)))
            e(f"{M32} {vr(24+16*t,16)}, v[104:107], {vr(72+4*j)}, {'0' if j == 0 else vr(24+16*t,16)}")
    e(f"v_lshlrev_b32 v111, 2, v0\nv_add_u32 v111, {L_CS}, v111\ns_mov_b32 exec_hi, 0")
    for t in range(3): e(f"ds_add_f32 v111, v{24+16*t} offset:{128*t}")
    e("s_mov_b64 exec, -1\ns_waitcnt lgkmcnt(0)\ns_barrier")
    a.pop(); a.label(L)
    for i in range(4): e(f"v_mov_b32 v{104+i}, 0")
    def rdW(part, ks, buf): return mk(f"ds_read_b128 {vr(72+4*buf)}, {'v110' if part == 2 else 'v1'} offset:{(part%2)*32768 + 1024*ks}", ("w", part, ks))
    D = 3
    for ks in range(D): a.put(rdW(1, ks, 2*(ks%4))); a.put(rdW(2, ks, 2*(ks%4)+1))
    for ks in range(32):
        x = 128 + 4*ks; b = 2*(ks%4)
        a.put(a.wv(("x", ks))); a.put(a.wl(("w", 1, ks)))
        e(f"{M32} v[24:39], {vr(72+4*b)}, {vr(x)}, {'0' if ks == 0 else 'v[24:39]'}")
        if ks + D < 32: a.put(rdW(1, ks+D, 2*((ks+D)%4)))
        else: a.put(rdW(0, ks+D-32, 2*((ks+D)%4)))
        for i in range(2): e(f"v_dot2c_f32_bf16 v{104+i}, s46, v{x+i}\nv_dot2c_f32_bf16 v{106+i}, v{x+i}, v{x+i}")
        a.put(a.wl(("w", 2, ks)))
        e(f"{M32} v[40:55], {vr(x)}, {vr(76+4*b)}, {'0' if ks == 0 else 'v[40:55]'}")
        if ks + D < 32: a.put(rdW(2, ks+D, 2*((ks+D)%4)+1))
        for i in range(2): e(f"v_dot2c_f32_bf16 v{104+i}, s46, v{x+2+i}\nv_dot2c_f32_bf16 v{106+i}, v{x+2+i}, v{x+2+i}")
    mainq = []
    for ks in range(32):
        mainq.append(a.wl(("w", 0, ks)))
        mainq.append(f"{M32} v[56:71], {vr(72+8*(ks%4))}, {vr(128+4*ks)}, {'0' if ks == 0 else 'v[56:71]'}")
        if ks + D < 32: mainq.append(rdW(0, ks+D, 2*((ks+D)%4)))
    F4 = [76, 84, 92, 100]
    f = []
    f += ["s_nop 2", "v_add_f32 v104, v104, v105", "v_add_f32 v106, v106, v107", "v_lshrrev_b32 v111, 5, v0", "v_mov_b32 v105, v104", "v_mov_b32 v107, v106",
          "v_lshlrev_b32 v111, 4, v111", "v_permlane32_swap_b32 v104, v105", "v_permlane32_swap_b32 v106, v107", f"v_add_u32 v111, {L_CS}, v111"]
    for j in range(4): f.append(mk(f"ds_read_b128 {vr(112+4*j)}, v111 offset:{128 + 32*j}", "csk"))
    f += ["v_add_f32 v104, v104, v105", "v_add_f32 v106, v106, v107", f"v_mul_f32 v108, {fb(1/512)}, v104", f"v_mul_f32 v106, {fb(1/512)}, v106",
          "v_fma_f32 v106, -v108, v108, v106", "v_max_f32 v106, 0, v106", f"v_add_f32 v106, {fb(1e-5)}, v106", "v_rsq_f32 v109, v106",
          "v_and_b32 v104, 31, v0", "v_lshlrev_b32 v104, 2, v104", "s_lshl_b32 s24, s16, 8", f"s_add_u32 s24, s24, {L_ST1}", "v_add_u32 v105, s24, v104", f"v_add_u32 v104, {L_CS + 256}, v104",
          "ds_write_b32 v105, v108", "ds_write_b32 v105, v109 offset:128", mk("ds_read_b32 v107, v104", "csv"), f"s_sub_u32 s24, s24, {L_CS}", "v_add_u32 v105, s24, v111"]
    for j in range(4): f.append(mk(f"ds_read_b128 {vr(F4[j])}, v105 offset:{32*j}", "vm"))
    f.append(a.wl("csk"))
    for r in range(16): f.append(f"v_fma_f32 v{24+r}, -v108, v{112+r}, v{24+r}")
    for j in range(4): f.append(mk(f"ds_read_b128 {vr(112+4*j)}, v105 offset:{128 + 32*j}", "vrs"))
    for r in range(16): f.append(f"v_mul_f32 v{24+r}, v109, v{24+r}")
    for p in range(8): f.append(f"v_cvt_pk_bf16_f32 v{24+p}, v{24+2*p}, v{25+2*p}")
    f += [f"s_lshl_b32 s24, s16, 12", f"s_add_u32 s25, s24, {SCR + 32768}", "v_add_u32 v104, s25, v1",
          "s_lshl_b32 s25, s14, 4", "s_add_u32 s25, s25, s15", "s_lshl_b32 s25, s25, 14", "s_add_u32 s25, s25, s24", "s_add_u32 s25, s25, s17"]
    f += [mk(f"buffer_store_dwordx4 v[24:27], v1, {WS}, s25 offen sc1", "kv"), mk(f"buffer_store_dwordx4 v[28:31], v1, {WS}, s25 offen offset:1024 sc1", "kv"),
          "ds_write_b128 v104, v[24:27]", "ds_write_b128 v104, v[28:31] offset:1024"]
    f.append(a.wl("vm"))
    for r in range(16): f.append(f"v_fma_f32 v{40+r}, -v{F4[r//4]+r%4}, v107, v{40+r}")
    f.append(a.wl("vrs"))
    for r in range(16): f.append(f"v_mul_f32 v{40+r}, v{112+r}, v{40+r}")
    for j in range(4): f.append(mk(f"ds_read_b128 {vr(112+4*j)}, v111 offset:{32*j}", "csq"))
    for p in range(8): f.append(f"v_cvt_pk_bf16_f32 v{40+p}, v{40+2*p}, v{41+2*p}")
    f += [mk(f"buffer_store_dwordx4 v[40:43], v1, {WS}, s25 offen offset:2048 sc1", "kv"), mk(f"buffer_store_dwordx4 v[44:47], v1, {WS}, s25 offen offset:3072 sc1", "kv"),
          "ds_write_b128 v104, v[40:43] offset:2048", "ds_write_b128 v104, v[44:47] offset:3072", f"v_mul_f32 v109, {fb(0.25*LOG2E)}, v109"]
    a.weave(mainq, f, 5)
    a.put(a.wl("csq"))
    for r in range(16): e(f"v_fma_f32 v{56+r}, -v108, v{112+r}, v{56+r}")
    for r in range(16): e(f"v_mul_f32 v{56+r}, v109, v{56+r}")
    for p in range(8): e(f"v_cvt_pk_bf16_f32 v{56+p}, v{56+2*p}, v{57+2*p}")
    e(f"s_lshl_b32 s24, s16, 11\ns_add_u32 s24, s24, {L_Q}\nv_add_u32 v104, s24, v1\nds_write_b128 v104, v[56:59]\nds_write_b128 v104, v[60:63] offset:1024")
    e("s_waitcnt vmcnt(0) lgkmcnt(0)")
    e(f"s_lshl_b32 s28, s18, 8\ns_lshl_b32 s24, s14, 4\ns_add_u32 s28, s28, s24\ns_add_u32 s28, s28, s15\ns_lshl_b32 s28, s28, 7\ns_add_u32 s28, s28, {KVF}")
    signal(lambda: e("s_mov_b32 s24, s28"))
    stamp()
    for d in (1, 2):
        L = a.newlab("K2R")
        e(f"s_cmp_lt_u32 s14, {d}\ns_cbranch_scc1 {L}")
        a.push()
        e(f"s_sub_u32 s24, s28, {2048*d}"); poll("s24", 1)
        e(f"s_sub_u32 s24, s25, {d*16*16384}\ns_lshl_b32 s26, s16, 12\ns_add_u32 s26, s26, {SCR + (2-d)*16384}")
        dma4("s26", "s24", "rkv")
        a.pop(); a.label(L)
    e("s_waitcnt vmcnt(0)")
    e(f"s_and_b32 s24, s15, 3\ns_lshl_b32 s24, s24, 2\ns_add_u32 s24, s24, s16\ns_lshl_b32 s24, s24, 15\ns_add_u32 s24, s24, {WO}")
    for i in range(32):
        e(f"buffer_load_dwordx4 {woR(i)}, v1, {WS}, s24 offen offset:{1024*(i%4)}", "wo")
        if i % 4 == 3 and i < 31: e("s_add_u32 s24, s24, 4096")
    e("s_barrier")
    stamp()
    Q, K0, S, Mg, NM, O, P, V = 24, 28, [64, 80], 96, 112, 128, 144, [160, 168]
    TM = 176
    for i in range(16): e(f"v_mov_b32 v{160+i}, s46")
    for u in range(2):
        e(f"s_lshr_b32 s30, s16, 1\ns_add_u32 s30, s30, {2*u}\ns_add_u32 s31, s30, 8\ns_sub_u32 s31, s31, s19\ns_min_u32 s31, s31, 7")
        e(f"s_lshl_b32 s24, s30, 12\ns_add_u32 s24, s24, {SCR}\nv_add_u32 v{TM}, s24, v1\ns_lshl_b32 s26, s42, 10\nv_add_u32 v{TM+1}, s26, v{TM}")
        e(f"s_lshl_b32 s24, s30, 11\ns_add_u32 s24, s24, s26\ns_add_u32 s24, s24, {L_Q}\nv_add_u32 v{TM+2}, s24, v1")
        e(f"ds_read_b128 {vr(Q)}, v{TM+2}", "q")
        order = [8, 0, 7, 6, 5, 4, 3, 2, 1]
        for j, kt in enumerate(order): e(f"ds_read_b128 {vr(K0+4*j)}, v{TM+1} offset:{4096*kt}", ("k", j))
        def rdV(kt, buf, tag):
            e("s_mov_b64 exec, s[44:45]")
            e(f"ds_read_b128 {vr(V[buf])}, v{TM} offset:{4096*kt+2048}\nds_read_b128 {vr(V[buf]+4)}, v{TM} offset:{4096*kt+3072}", tag)
            e("s_mov_b64 exec, -1")
        rdV(8, 0, "vd"); rdV(0, 1, "vo")
        a.put(a.wl(("k", 0))); e(f"{M32} {vr(Mg,16)}, {vr(K0)}, {vr(Q)}, 0")
        a.put(a.wl(("k", 1))); e(f"{M32} {vr(NM,16)}, {vr(K0+4)}, {vr(Q)}, 0")
        a.put(a.wl(("k", 2))); e(f"{M32} {vr(S[0],16)}, {vr(K0+8)}, {vr(Q)}, 0")
        a.put(a.wl(("k", 3))); e(f"{M32} {vr(S[1],16)}, {vr(K0+12)}, {vr(Q)}, 0")
        e("s_waitcnt lgkmcnt(0)\ns_nop 7")
        L = a.newlab("K2OV")
        e(f"s_cmp_ge_u32 s30, s19\ns_cbranch_scc1 {L}")
        for r in range(16): e(f"v_mov_b32 v{NM+r}, 0xf149f2ca")
        a.label(L)
        for r in range(16): e(f"v_cndmask_b32 v{Mg+r}, v{NM+r}, v{Mg+r}, s[{64+2*r}:{65+2*r}]")
        mx = TM + 3
        e(f"v_max3_f32 v{mx}, v{Mg}, v{Mg+1}, v{Mg+2}\nv_max3_f32 v{mx+1}, v{Mg+3}, v{Mg+4}, v{Mg+5}")
        for r in range(6, 16, 2): e(f"v_max3_f32 v{mx+(r//2)%2}, v{Mg+r}, v{Mg+r+1}, v{mx+(r//2)%2}")
        X1 = a.newlab("K2P1")
        for j in range(7):
            e(f"s_cmp_le_u32 s31, {j}\ns_cbranch_scc1 {X1}")
            s = S[j%2]
            for r in range(0, 16, 2): e(f"v_max3_f32 v{mx+(r//2)%2}, v{s+r}, v{s+r+1}, v{mx+(r//2)%2}")
            if j + 2 < 7: e(f"{M32} {vr(s,16)}, {vr(K0+4*(j+4))}, {vr(Q)}, 0")
        a.label(X1)
        e(f"v_max_f32 v{mx}, v{mx}, v{mx+1}\nv_mov_b32 v{mx+1}, v{mx}\nv_permlane32_swap_b32 v{mx}, v{mx+1}\nv_max_f32 v{mx}, v{mx}, v{mx+1}")
        for r in range(16): e(f"v_sub_f32 v{NM+r}, 0, v{mx}")
        e(f"{M32} {vr(S[0],16)}, {vr(K0+8)}, {vr(Q)}, {vr(NM,16)}")
        if u == 0:
            L = a.newlab("W13L")
            e(f"s_cmp_lg_u32 s18, 0\ns_cbranch_scc1 {L}")
            a.push()
            e(f"s_lshl_b32 s24, s15, 2\ns_add_u32 s24, s24, s16\ns_mul_i32 s24, s24, 49152\ns_add_u32 s24, s24, {W13}\ns_waitcnt vmcnt(12)")
            for i in range(48):
                e(f"buffer_load_dwordx4 {ar(4*i)}, v1, {WS}, s24 offen offset:{1024*(i%4)}")
                if i % 4 == 3 and i < 47: e("s_add_u32 s24, s24, 4096")
            a.pop(); a.label(L)
        else:
            a.put(a.wv("oA")); signal_cnt(T_OA, TM+5)
        for r in range(16): e(f"v_sub_f32 v{Mg+r}, v{Mg+r}, v{mx}")
        for r in range(16): e(f"v_exp_f32 v{Mg+r}, v{Mg+r}")
        for p in range(8): e(f"v_cvt_pk_bf16_f32 v{P+8+p}, v{Mg+2*p}, v{Mg+2*p+1}")
        for p in range(8): e(f"v_and_b32 v{P+p}, v{4+p}, v{P+8+p}")
        e(f"{M32} {vr(O,16)}, {vr(V[0])}, {vr(P)}, 0")
        for p in range(8): e(f"v_xor_b32 v{P+8+p}, v{P+p}, v{P+8+p}")
        e(f"{M32} {vr(O,16)}, {vr(V[0]+4)}, {vr(P+4)}, {vr(O,16)}")
        L = a.newlab("K2OV")
        e(f"s_cmp_lt_u32 s30, s19\ns_cbranch_scc1 {L}")
        e(f"{M32} {vr(O,16)}, {vr(V[1])}, {vr(P+8)}, {vr(O,16)}\n{M32} {vr(O,16)}, {vr(V[1]+4)}, {vr(P+12)}, {vr(O,16)}")
        a.label(L)
        rdV(7, 0, ("v", 0))
        X2 = a.newlab("K2P2")
        for j in range(7):
            e(f"s_cmp_le_u32 s31, {j}\ns_cbranch_scc1 {X2}")
            a.push()
            s = S[j%2]; vb = V[j%2]
            if j + 1 < 7:
                e(f"{M32} {vr(S[(j+1)%2],16)}, {vr(K0+4*(j+3))}, {vr(Q)}, {vr(NM,16)}")
                rdV(7-(j+1), (j+1)%2, ("v", j+1))
            for r in range(8): e(f"v_exp_f32 v{s+r}, v{s+r}")
            for p in range(4): e(f"v_cvt_pk_bf16_f32 v{P+p}, v{s+2*p}, v{s+2*p+1}")
            for r in range(8, 10): e(f"v_exp_f32 v{s+r}, v{s+r}")
            a.put(a.wl(("v", j)))
            e(f"{M32} {vr(O,16)}, {vr(vb)}, {vr(P)}, {vr(O,16)}")
            for r in range(10, 16): e(f"v_exp_f32 v{s+r}, v{s+r}")
            for p in range(4, 8): e(f"v_cvt_pk_bf16_f32 v{P+p}, v{s+2*p}, v{s+2*p+1}")
            e(f"{M32} {vr(O,16)}, {vr(vb+4)}, {vr(P+4)}, {vr(O,16)}")
        for j in range(7): a.pop()
        a.label(X2)
        e("s_waitcnt lgkmcnt(0)\ns_nop 11")
        L = a.newlab("K2H"); L2 = a.newlab("K2H")
        e(f"s_cmp_lg_u32 s42, 0\ns_cbranch_scc1 {L}")
        e(f"v_rcp_f32 v{mx}, v{O+8}")
        for r in range(8): e(f"v_mul_f32 v{O+r}, v{mx}, v{O+r}")
        e(f"s_branch {L2}")
        a.label(L)
        e(f"v_rcp_f32 v{mx}, v{O}")
        for r in range(8): e(f"v_mul_f32 v{O+r}, v{mx}, v{O+8+r}")
        a.label(L2)
        for p in range(4): e(f"v_cvt_pk_bf16_f32 v{TM+8+p}, v{O+2*p}, v{O+2*p+1}")
        e(f"s_lshl_b32 s24, s30, 15\ns_add_u32 s24, s24, s41\ns_lshl_b32 s26, s15, 1\ns_add_u32 s26, s26, s42\ns_lshl_b32 s26, s26, 9\ns_add_u32 s24, s24, s26\ns_add_u32 s24, s24, s17\ns_add_u32 s24, s24, {oO}")
        e(f"buffer_store_dwordx4 {vr(TM+8)}, v2, {WS}, s24 offen sc1", "oA" if u == 0 else "oB")
    e("s_waitcnt vmcnt(0)")
    signal_cnt(T_OA + 1)
    stamp()
    L = a.newlab("CS13")
    e(f"s_cmp_lg_u32 s18, 0\ns_cbranch_scc1 {L}")
    for i in range(4): e(f"v_mov_b32 v{24+i}, s46")
    for ks in range(16):
        for t in range(3): e(f"{M16} {vr(12+4*t)}, {ar(64*t+4*ks)}, v[24:27], {'0' if ks == 0 else vr(12+4*t)}")
    a.label(L)
    e("s_lshr_b32 s29, s15, 2\ns_lshl_b32 s29, s29, 14\ns_add_u32 s29, s29, s41\ns_and_b32 s30, s15, 3\ns_lshl_b32 s30, s30, 2\ns_add_u32 s30, s30, s16")
    e(f"s_lshl_b32 s31, s30, 10\ns_add_u32 s31, s31, s29\ns_add_u32 s24, s31, s20\ns_add_u32 s24, s24, {oX2}")
    e(f"buffer_load_dwordx4 v[100:103], v1, {WS}, s24 offen sc1\ns_add_u32 s24, s24, 65536\nbuffer_load_dwordx4 v[104:107], v1, {WS}, s24 offen sc1")
    e(f"v_add_u32 v108, {SCR}, v1\nv_and_b32 v109, 15, v0\nv_lshlrev_b32 v109, 3, v109\nv_lshrrev_b32 v110, 5, v0\nv_lshl_add_u32 v109, v110, 2, v109")
    for hf in range(2):
        poll_cnt(T_OA + hf)
        stamp()
        e(f"s_lshl_b32 s26, s16, 12\ns_add_u32 s24, s26, s29\ns_add_u32 s24, s24, s17\ns_add_u32 s24, s24, {oO + 65536*hf}\ns_add_u32 s26, s26, {SCR + 16384*hf}")
        dma4("s26", "s24", "o")
        e("s_waitcnt vmcnt(0)")
        e("s_barrier")
        for ks in range(16): e(f"ds_read_b128 {vr(32+4*ks)}, v108 offset:{16384*hf + 1024*ks}", ("o", ks))
        for ks in range(16):
            a.put(a.wl(("o", ks)))
            for t in range(2): e(f"{M16} {vr(24+4*t)}, {woR(16*t+ks)}, {vr(32+4*ks)}, {'0' if ks == 0 else vr(24+4*t)}")
        R = 100 + 4*hf
        for p in range(4): e(f"v_lshlrev_b32 v{32+2*p}, 16, v{R+p}\nv_and_b32 v{33+2*p}, 0xffff0000, v{R+p}")
        for r in range(8): e(f"v_add_f32 v{24+r}, v{24+r}, v{32+r}")
        for p in range(4): e(f"v_cvt_pk_bf16_f32 v{96+p}, v{24+2*p}, v{25+2*p}")
        e(f"s_add_u32 s24, s31, s17\ns_add_u32 s24, s24, {oX1 + 65536*hf}\nbuffer_store_dwordx4 v[96:99], v1, {WS}, s24 offen sc1")
        e("v_add_f32 v32, v24, v25\nv_mul_f32 v33, v24, v24\nv_fmac_f32 v33, v25, v25")
        for r in range(2, 8): e(f"v_add_f32 v32, v32, v{24+r}\nv_fmac_f32 v33, v{24+r}, v{24+r}")
        e("v_permlane32_swap_b32 v32, v33\nv_add_f32 v32, v32, v33\nv_mov_b32 v33, v32\nv_permlane16_swap_b32 v32, v33\nv_add_f32 v32, v32, v33")
        e(f"s_lshr_b32 s24, s29, 3\ns_lshl_b32 s26, s30, 7\ns_add_u32 s24, s24, s26\ns_add_u32 s24, s24, s17\ns_add_u32 s24, s24, {oST + 8192*hf}")
        e(f"buffer_store_dword v32, v109, {WS}, s24 offen sc1")
        e("s_waitcnt vmcnt(0)")
        signal_cnt(T_X1A + hf)
    stamp()
    e(f"s_lshl_b32 s26, s16, 12\ns_add_u32 s29, s41, s17\ns_add_u32 s29, s29, s26\ns_add_u32 s29, s29, {oX1}\ns_add_u32 s27, s26, {SCR}")
    for t in range(4): e(f"s_add_u32 s{32+t}, s15, {t}\ns_and_b32 s{32+t}, s{32+t}, 3")
    e(f"v_add_u32 v120, {SCR}, v1\nv_and_b32 v122, 15, v0\nv_lshlrev_b32 v121, 5, v122\nv_add_u32 v121, {L_SP}, v121\nv_lshrrev_b32 v123, 4, v0")
    e(f"v_lshlrev_b32 v124, 11, v123\nv_lshl_add_u32 v124, v122, 3, v124")
    e(f"v_add_u32 v123, s15, v123\nv_and_b32 v123, 3, v123\nv_mul_u32_u24 v123, {HRT}, v123\nv_lshl_add_u32 v122, v122, 4, v123")
    e(f"s_lshl_b32 s24, s16, 3\ns_add_u32 s24, s24, {L_SP}\nv_lshl_add_u32 v123, v0, 5, s24")
    e(f"s_lshr_b32 s36, s41, 3\ns_lshl_b32 s24, s16, 9\ns_add_u32 s36, s36, s24\ns_add_u32 s36, s36, s17\ns_add_u32 s36, s36, {oST}")
    e(f"s_lshl_b32 s24, s15, 2\ns_add_u32 s24, s24, s16\ns_mul_i32 s24, s24, 3\ns_mul_i32 s25, s14, {8*HRT}\ns_add_u32 s25, s25, s17\ns_add_u32 s25, s25, {oH}")
    for k in range(3):
        e(f"s_add_u32 s26, s24, {k}\ns_lshl_b32 s{37+k}, s26, 8\ns_add_u32 s{37+k}, s{37+k}, s25\ns_cmp_lt_u32 s26, 172\ns_cselect_b32 s{37+k}, s{37+k}, 0x40000000")
    e(f"s_and_b32 s40, s15, 7\ns_mul_i32 s40, s40, {2*86*1024}\ns_mul_i32 s24, s16, {22*1024}\ns_add_u32 s40, s40, s24\ns_add_u32 s40, s40, {W2}")
    def dmaT(t):
        r = [f"s_lshl_b32 s24, s{32+t%4}, 14", "s_add_u32 s24, s24, s29"]
        if t >= 4: r.append("s_add_u32 s24, s24, 65536")
        r.append(f"s_add_u32 m0, s27, {16384*(t%3)}")
        r += [mk(f"buffer_load_dwordx4 v1, {WS}, s24 offen offset:{1024*i} sc1 lds", ("xt", t)) for i in range(4)]
        return r
    def stLoad(hf):
        r = [f"s_add_u32 s24, s36, {8192*hf}"]
        return r + [mk(f"buffer_load_dwordx2 {vr(112+2*i,2)}, v124, {WS}, s24 offen offset:{128*i} sc1", ("st", hf)) for i in range(4)]
    def stSum(hf):
        return [a.wv(("st", hf)), "v_add_f32 v112, v112, v114", "v_add_f32 v113, v113, v115", "v_add_f32 v116, v116, v118", "v_add_f32 v117, v117, v119",
                "v_add_f32 v112, v112, v116", "v_add_f32 v113, v113, v117", mk(f"ds_write_b64 v123, v[112:113] offset:{2048*hf}", ("stw", hf))]
    poll_cnt(T_X1A)
    stamp()
    for x in dmaT(0) + stLoad(0) + dmaT(1) + dmaT(2): a.put(x)
    for x in stSum(0): a.put(x)
    e("s_waitcnt lgkmcnt(0)\ns_barrier")
    NB = 6; DX = 5
    def rdX(n):
        t, ks = divmod(n, 16)
        return mk(f"ds_read_b128 {vr(48+4*(n%NB))}, v120 offset:{16384*(t%3)+1024*ks}", ("xf", n))
    def epi(t):
        A = 24 + 12*(t%2); H = 72 + 12*(t//4)
        r = [f"s_lshl_b32 s24, s{32+t%4}, 9", "v_add_u32 v107, s24, v121",
             mk(f"ds_read_b128 v[96:99], v107 offset:{2048*(t//4)}", ("sr", t)), mk(f"ds_read_b128 v[100:103], v107 offset:{2048*(t//4)+16}", ("sr", t)), "s_nop 0", "s_nop 0", "s_nop 0", "s_nop 0", a.wl(("sr", t)),
             "v_add_f32 v96, v96, v98", "v_add_f32 v97, v97, v99", "v_add_f32 v100, v100, v102", "v_add_f32 v101, v101, v103", "v_add_f32 v96, v96, v100", "v_add_f32 v97, v97, v101",
             f"v_mul_f32 v104, {fb(1/512)}, v96", f"v_mul_f32 v106, {fb(1/512)}, v97", "v_fma_f32 v106, -v104, v104, v106", "v_max_f32 v106, 0, v106", f"v_add_f32 v106, {fb(1e-5)}, v106", "v_rsq_f32 v105, v106"]
        for i in range(12): r.append(f"v_fma_f32 v{A+i}, -v104, v{12+i}, v{A+i}")
        r.append(f"v_mul_f32 v105, {fb(-LOG2E)}, v105")
        for k in range(3):
            b = A + 4*k
            r += [f"v_mul_f32 v108, v105, v{b}", f"v_mul_f32 v109, v105, v{b+1}", "v_exp_f32 v108, v108", "v_exp_f32 v109, v109",
                  f"v_mul_f32 v{b}, v{b}, v{b+2}", f"v_mul_f32 v{b+1}, v{b+1}, v{b+3}", "v_fma_f32 v108, v108, v106, v106", "v_fma_f32 v109, v109, v106, v106",
                  "v_rcp_f32 v108, v108", "v_rcp_f32 v109, v109", "s_nop 0", f"v_mul_f32 v{b}, v{b}, v108", f"v_mul_f32 v{b+1}, v{b+1}, v109", f"v_cvt_pk_bf16_f32 v{H+4*k+t%4}, v{b}, v{b+1}"]
        return r
    def hstore(hf):
        H = 72 + 12*hf; r = []
        for k in range(3):
            b = H + 4*k
            r += [f"v_permlane32_swap_b32 v{b}, v{b+2}", f"v_permlane32_swap_b32 v{b+1}, v{b+3}"]
        for k in range(3):
            b = H + 4*k
            r += [f"v_permlane16_swap_b32 v{b}, v{b+1}", f"v_permlane16_swap_b32 v{b+2}, v{b+3}"]
        for k in range(3):
            if hf: r.append(f"s_add_u32 s{37+k}, s{37+k}, {4*HRT}")
            r.append(mk(f"buffer_store_dwordx4 {vr(H+4*k)}, v122, {WS}, s{37+k} offen sc1", ("h", hf)))
        return r
    def w2ld(i):
        st, t = divmod(i, 2)
        return [f"s_add_u32 s25, s40, {t*86*1024 + st*1024}", mk(f"buffer_load_dwordx4 {setB(i)}, v1, {WS}, s25 offen", "w2")]
    for n in range(DX): a.put(rdX(n))
    for t in range(8):
        A = 24 + 12*(t%2)
        def seg(k0, k1):
            m = []
            for ks in range(k0, k1):
                n = 16*t + ks
                m.append(a.wl(("xf", n)))
                for k in range(3):
                    m.append(f"{M16} {vr(A+4*k)}, {ar(64*k+4*ks)}, {vr(48+4*(n%NB))}, {'0' if ks == 0 else vr(A+4*k)}")
                if n + DX < 128: m.append(rdX(n + DX))
            return m
        a.weave(seg(0, 1), [], 0)
        f1 = []
        if t == 2:
            L = a.newlab("APX")
            a.put(a.wv("apx")); e(f"v_readfirstlane_b32 s23, v125\ns_cmp_ge_u32 s23, 16\ns_cbranch_scc1 {L}")
            a.push(); poll_cnt(T_X1A + 1); a.pop(); a.label(L)
        if t == 6: a.put(a.wv(("h", 0))); signal_cnt(T_HA)
        elif 1 <= t <= 5: e("s_barrier")
        if 1 <= t <= 5: f1 += dmaT(t + 2)
        if t == 2: f1 += stLoad(1)
        if t == 1: f1 += [f"s_add_u32 s24, s22, {2048*(T_X1A+1)}", mk(f"buffer_load_dword v125, off, {WS}, s24 sc1", "apx")]
        if t == 5: f1 += hstore(0)
        ep = epi(t - 1) if t >= 1 else []
        wl_ = []
        for i in range(*{0: (0, 16), 1: (16, 20), 2: (20, 24), 3: (24, 28), 4: (28, 32), 5: (32, 32), 6: (32, 38), 7: (38, 44)}[t]): wl_ += w2ld(i)
        fill = f1 + ep + wl_
        if t == 3: fill += stSum(1)
        cut = min(len(fill), 52)
        a.weave(seg(1, 10), fill[:cut], 2)
        if t < 7: a.put(a.wv(("xt", t + 1))); e("s_barrier")
        a.weave(seg(10, 16), fill[cut:], 2)
    for x in epi(7) + hstore(1): a.put(x)
    e("s_lshr_b32 s29, s15, 3\ns_lshl_b32 s29, s29, 1\ns_lshl_b32 s24, s14, 3\ns_add_u32 s29, s29, s24\ns_and_b32 s30, s15, 7\ns_lshl_b32 s30, s30, 2\ns_add_u32 s30, s30, s16")
    e(f"s_mul_i32 s31, s29, {HRT}\ns_mul_i32 s24, s16, {22*512}\ns_add_u32 s31, s31, s24\ns_add_u32 s31, s31, s17\ns_add_u32 s31, s31, {oH}")
    e(f"s_lshl_b32 s32, s29, 14\ns_lshl_b32 s24, s30, 9\ns_add_u32 s33, s32, s24\ns_add_u32 s33, s33, s17")
    e(f"s_lshl_b32 s24, s30, 5\ns_add_u32 s34, s32, s24\ns_add_u32 s24, s33, {oX2}\ns_cmp_eq_u32 s18, 0\ns_cselect_b32 s34, s24, s34")
    e("s_waitcnt vmcnt(0)")
    signal_cnt(T_HA + 1)
    stamp()
    for hf in range(2):
        poll_cnt(T_HA + hf)
        stamp()
        e(f"s_add_u32 s24, s31, {4*HRT*hf}")
        L3 = a.newlab("K5S")
        for st in range(22):
            if st == 20: e(f"s_cmp_eq_u32 s16, 3\ns_cbranch_scc1 {L3}"); a.push()
            e(f"buffer_load_dwordx4 {vr(56+4*st)}, v3, {WS}, s24 offen offset:{512*(st%8)} sc1", ("hf", st))
            if st % 8 == 7: e("s_add_u32 s24, s24, 4096")
        a.pop(); a.label(L3)
        L3 = a.newlab("K5S")
        for st in range(22):
            if st == 20: e(f"s_cmp_eq_u32 s16, 3\ns_cbranch_scc1 {L3}\ns_waitcnt vmcnt(0)"); a.push()
            if st < 20: a.put(a.wv(("hf", st)))
            for t in range(2): e(f"{M32} {vr(24+16*t,16)}, {setB(2*st+t)}, {vr(56+4*st)}, {'0' if st == 0 else vr(24+16*t,16)}")
            if st == 1: e(f"s_add_u32 s24, s33, {oX1 + 65536*hf}\nbuffer_load_dwordx4 v[56:59], v2, {WS}, s24 offen sc1", "res")
        a.pop(); a.label(L3)
        e(f"s_lshl_b32 s24, s16, 11\ns_add_u32 s24, s24, {SCR}\nv_add_u32 v60, s24, v1\ns_lshl_b32 s24, s16, 13\ns_add_u32 s24, s24, {SCR}\nv_add_u32 v61, s24, v1\ns_nop 7")
        for q in range(4):
            for j in range(2): e(f"ds_write_b128 v60, {vr(24+8*q+4*j)} offset:{8192*q+1024*j}")
        e("s_waitcnt lgkmcnt(0)\ns_barrier")
        for i in range(8): e(f"ds_read_b128 {vr(24+4*i)}, v61 offset:{1024*i}", ("rd", i))
        e("s_waitcnt vmcnt(0)")
        for p in range(4): e(f"v_lshlrev_b32 v{64+2*p}, 16, v{56+p}\nv_and_b32 v{65+2*p}, 0xffff0000, v{56+p}")
        e("v_lshrrev_b32 v62, 5, v0\nv_and_b32 v63, 31, v0\nv_lshlrev_b32 v63, 10, v63\nv_lshl_add_u32 v63, v62, 4, v63\ns_cmp_eq_u32 s18, 0\ns_cselect_b64 vcc, -1, 0\nv_cndmask_b32 v63, v63, v2, vcc")
        for sw in range(4):
            a.put(a.wl(("rd", 2*sw+1)))
            for r in range(8): e(f"v_add_f32 v{64+r}, v{64+r}, v{24+8*sw+r}")
        for p in range(4): e(f"v_cvt_pk_bf16_f32 v{72+p}, v{64+2*p}, v{65+2*p}")
        e(f"s_add_u32 s24, s34, {65536*hf}\nbuffer_store_dwordx4 v[72:75], v63, s[8:11], s24 offen sc1")
        e("s_waitcnt vmcnt(0)")
        signal_cnt(T_X2A + hf)
    stamp()
    e(f"s_cmp_lg_u32 s18, 0\ns_cbranch_scc1 M_END")
    e(f"s_mov_b32 s18, 1\ns_mov_b32 s20, s17\ns_add_u32 s17, s17, {LSTR}\ns_add_u32 s22, s22, 32768")
    srd(a, 8, 12, 0x200000)
    e("s_branch LAYER")
    a.label("M_END")
    e("s_endpgm")
    return a.resolve()

if __name__ == "__main__":
    out = [x for x in sys.argv[1:] if not x.startswith("--")][0]
    open(out, "w").write(build(main()))
```

```python
import sys
HDR = """; @launch grid=(256,1,1) block=(%d,1,1) lds=0
.amdgcn_target "amdgcn-amd-amdhsa--gfx950"
.text
.globl mb_kernel
.p2align 8
.type mb_kernel,@function
mb_kernel:
"""
FTR = """
s_endpgm
.section .rodata,"a"
.p2align 6
.amdhsa_kernel mb_kernel
  .amdhsa_next_free_vgpr 256
  .amdhsa_next_free_sgpr 102
  .amdhsa_accum_offset 256
  .amdhsa_group_segment_fixed_size 0
  .amdhsa_kernarg_size 80
  .amdhsa_user_sgpr_count 2
  .amdhsa_user_sgpr_kernarg_segment_ptr 1
  .amdhsa_system_sgpr_workgroup_id_x 1
.end_amdhsa_kernel
"""
def gen(block):
    o = [HDR % block]
    e = o.append
    e("s_load_dwordx2 s[4:5], s[0:1], 72")
    e("s_waitcnt lgkmcnt(0)")
    e("s_mov_b32 s8, s4\ns_mov_b32 s9, s5\ns_mov_b32 s10, 0x100000\ns_mov_b32 s11, 0x20000")
    for i in range(1, 128): e(f"v_mov_b32 v{i}, 0.5")
    tests = []
    def t_exp():
        for i in range(64): e(f"v_exp_f32 v{32+i%32}, v{1+i%16}")
    def t_fma():
        for i in range(64): e(f"v_fma_f32 v{32+i%32}, v{1+i%16}, v2, v3")
    def t_mix():
        for r in range(4):
            for j in range(4):
                e(f"v_mfma_f32_32x32x16_bf16 v[{64+16*(j%4)}:{79+16*(j%4)}], v[4:7], v[8:11], v[{64+16*(j%4)}:{79+16*(j%4)}]")
                for i in range(4): e(f"v_exp_f32 v{32+(4*j+i)%16}, v{12+i}")
                e(f"v_max3_f32 v48, v12, v13, v14"); e(f"v_max3_f32 v49, v12, v13, v14")
                e(f"v_cvt_pk_bf16_f32 v50, v12, v13"); e(f"v_cvt_pk_bf16_f32 v51, v12, v13")
    def t_mfma16v2():
        for i in range(64):
            j = i % 8
            e(f"v_mfma_f32_16x16x32_bf16 v[{64+4*j}:{67+4*j}], v[4:7], v[8:11], v[{64+4*j}:{67+4*j}]")
            e("v_fma_f32 v32, v12, v2, v3"); e("v_fma_f32 v33, v12, v2, v3")
    def t_mfma16v3():
        for i in range(64):
            j = i % 8
            e(f"v_mfma_f32_16x16x32_bf16 v[{64+4*j}:{67+4*j}], v[4:7], v[8:11], v[{64+4*j}:{67+4*j}]")
            e("v_fma_f32 v32, v12, v2, v3"); e("v_fma_f32 v33, v12, v2, v3"); e("v_fma_f32 v34, v12, v2, v3")
    def t_pkmul():
        for i in range(64): e(f"v_pk_mul_f32 v[{32+2*(i%16)}:{33+2*(i%16)}], v[2:3], v[4:5]")
    def t_perm():
        for i in range(64): e(f"v_perm_b32 v{32+i%32}, v{1+i%16}, v2, s10")
    tl = [t_exp, t_fma, t_mix, t_mfma16v2, t_mfma16v3, t_pkmul, t_perm]
    for n, t in enumerate(tl):
        e("s_barrier")
        e("s_memtime s[20:21]")
        e("s_waitcnt lgkmcnt(0)")
        e("s_mov_b32 s30, 16")
        e(f"L{n}:")
        t()
        e("s_sub_u32 s30, s30, 1\ns_cmp_lg_u32 s30, 0")
        e(f"s_cbranch_scc1 L{n}")
        e("s_memtime s[22:23]")
        e("s_waitcnt lgkmcnt(0)")
        e(f"s_sub_u32 s{40+n}, s22, s20")
    e("v_lshrrev_b32 v1, 6, v0\nv_lshlrev_b32 v1, 6, v1")
    e("s_lshl_b32 s3, s2, 10\nv_add_u32 v1, s3, v1")
    for n in range(len(tl)):
        e(f"v_mov_b32 v2, s{40+n}")
        e(f"buffer_store_dword v2, v1, s[8:11], 0 offen offset:{4*n}")
    e("s_waitcnt vmcnt(0)")
    o.append(FTR)
    return "\n".join(o)
open("mb1_256.s", "w").write(gen(256))
open("mb1_512.s", "w").write(gen(512))
```

```python
from mb1 import HDR, FTR
def gen():
    o = [(HDR % 256).replace("lds=0", "lds=163840")]
    e = o.append
    e("s_load_dwordx2 s[4:5], s[0:1], 72\ns_waitcnt lgkmcnt(0)")
    e("s_mov_b32 s8, s4\ns_mov_b32 s9, s5\ns_mov_b32 s10, 0x1000000\ns_mov_b32 s11, 0x20000")
    for i in range(2, 200): e(f"v_mov_b32 v{i}, 0.5")
    e("v_and_b32 v1, 63, v0\nv_lshlrev_b32 v1, 4, v1\ns_mov_b32 m0, 0x8000\ns_mov_b32 s12, 0x200000")
    def body(big, nv, ds, wt, vm, dma, bar, vstep=6):
        n = 24 if big else 48
        vi = 0
        for i in range(n):
            if big: e(f"v_mfma_f32_32x32x16_bf16 v[{64+16*(i%2)}:{79+16*(i%2)}], v[4:7], v[8:11], v[{64+16*(i%2)}:{79+16*(i%2)}]")
            else: e(f"v_mfma_f32_16x16x32_bf16 v[{64+4*(i%3)}:{67+4*(i%3)}], v[4:7], v[8:11], v[{64+4*(i%3)}:{67+4*(i%3)}]")
            k = (nv * (i + 1)) // n - (nv * i) // n
            for _ in range(k): e(f"v_fma_f32 v{32+vi%16}, v12, v2, v3"); vi += 1
            if (16 * (i + 1)) // n != (16 * i) // n:
                j = (16 * i) // n
                if ds: e(f"ds_read_b128 v[{100+4*(j%6)}:{103+4*(j%6)}], v1 offset:{1024*j}")
                if wt and j % 2 == 0: e("s_waitcnt lgkmcnt(4)")
            if (vm * (i + 1)) // n != (vm * i) // n:
                j = (vm * i) // n
                if dma: e(f"buffer_load_dwordx4 v1, s[8:11], s12 offen offset:{1024*(j%4)} sc1 lds")
                else: e(f"buffer_load_dwordx4 v[{128+4*(j%12)}:{131+4*(j%12)}], v1, s[8:11], s12 offen offset:{1024*(j%4)} sc1")
            if bar and i in (2, n // 2): e("s_barrier")
        if vm: e("s_add_u32 s12, s12, 4096\ns_waitcnt vmcnt(10)")
    T = [(0,0,0,0,0,0,0), (0,64,0,0,0,0,0), (0,64,1,0,0,0,0), (0,64,1,1,0,0,0), (0,64,1,1,0,0,1), (0,64,1,1,10,0,0), (0,64,1,1,10,1,0), (0,64,1,1,4,1,1), (0,0,1,1,10,0,0),
         (1,64,1,1,0,0,0), (1,64,1,1,10,0,1), (1,64,1,1,10,1,1), (1,96,1,1,10,0,1)]
    for n, t in enumerate(T):
        e("s_waitcnt vmcnt(0) lgkmcnt(0)\ns_barrier\ns_mov_b32 s30, 18")
        e(f"L{n}:")
        e(f"s_cmp_lg_u32 s30, 16\ns_cbranch_scc1 M{n}\ns_memtime s[20:21]\ns_waitcnt lgkmcnt(0)\nM{n}:")
        body(*t)
        e("s_sub_u32 s30, s30, 1\ns_cmp_lg_u32 s30, 0")
        e(f"s_cbranch_scc1 L{n}")
        e("s_memtime s[22:23]\ns_waitcnt lgkmcnt(0)")
        e(f"s_sub_u32 s{40+n}, s22, s20")
    e("v_lshrrev_b32 v1, 6, v0\nv_lshlrev_b32 v1, 6, v1\ns_lshl_b32 s3, s2, 10\nv_add_u32 v1, s3, v1")
    for n in range(len(T)):
        e(f"v_mov_b32 v2, s{40+n}\nbuffer_store_dword v2, v1, s[8:11], 0 offen offset:{4*n}")
    e("s_waitcnt vmcnt(0)")
    o.append(FTR)
    return "\n".join(o), T
src, T = gen()
open("mb5.s", "w").write(src)
open("run_mb5.py", "w").write(f'''from runner import *
ws = DeviceBuffer(1 << 25)
k, g, b, lds, _ = build("mb5.s", "mb_kernel")
ka = cl.pack_ptr_kernargs([ws.ptr] * 10)
for it in range(2): k.launch(g, b, ka, lds); sync()
r = ws.to_numpy(np.uint32, (256, 16, 16))
print("(big,nvalu,ds,wait,vmem,dma,bar)")
for n, t in enumerate({T}): print(t, np.median(r[:, :4, n]) / 16)
''')
```
